```python
import torch

def _softmax(x, axis=-1):
    return torch.softmax(x, dim=axis)
def _gelu(x):
    return torch.nn.functional.gelu(x, approximate="tanh")
def _silu(x):
    return torch.nn.functional.silu(x)
def _sigmoid(x):
    return torch.sigmoid(x)
def _layernorm(x, axis=-1, eps=1e-5):
    m = x.mean(dim=axis, keepdim=True)
    v = x.var(dim=axis, keepdim=True, unbiased=False)
    return (x - m) / torch.sqrt(v + eps)
def _scatter_add(tgt, idx, src, axis=0):
    return tgt.clone().index_add_(axis, idx, src)
def _segment_sum(src, seg, n):
    out = torch.zeros((n,) + src.shape[1:], dtype=src.dtype)
    return out.index_add_(0, seg, src)
def _pad(x, pw):
    flat = tuple(v for pair in reversed(pw) for v in pair)
    return torch.nn.functional.pad(x, flat)

kernel_name = 'concat_heads__sliding_block__grouped_kv_mqa__prompt'

def setup_inputs():

    _w = (lambda a: (lambda t: t.to(torch.bfloat16) if t.is_floating_point() else t)(torch.as_tensor(a)))
    def _A_setup():
        B, S, D = 1, 2048, 1024
        return {
            "x": _w((lambda *s: torch.randn(*s, dtype=torch.bfloat16) * 0.2)(B, S, D)),
            "wqkv": _w((lambda *s: torch.randn(*s, dtype=torch.bfloat16) * 0.2)(D, 3 * D)),
            "wo": _w((lambda *s: torch.randn(*s, dtype=torch.bfloat16) * 0.05)(D, D)),
        }
    _A_in = _A_setup()

    def _B_setup():
        B, S, D, H = 1, 2048, 1024, 32
        Dh = D // H
        return {
            "x": _w((lambda *s: torch.randn(*s, dtype=torch.bfloat16) * 0.05)(B, S, D)),
            "wq": _w((lambda *s: torch.randn(*s, dtype=torch.bfloat16) * 0.8)(D, H * Dh)),
            "wk": _w((lambda *s: torch.randn(*s, dtype=torch.bfloat16) * 0.8)(D, Dh)),
            "wv": _w((lambda *s: torch.randn(*s, dtype=torch.bfloat16) * 0.2)(D, Dh)),
            "wo": _w((lambda *s: torch.randn(*s, dtype=torch.bfloat16) * 0.2)(H * Dh, D)),
        }
    _B_in = _B_setup()

    return {
        "A_x": _A_in["x"],
        "A_wqkv": _A_in["wqkv"],
        "A_wo": _A_in["wo"],
        "B_x": _B_in["x"],
        "B_wq": _B_in["wq"],
        "B_wk": _B_in["wk"],
        "B_wv": _B_in["wv"],
        "B_wo": _B_in["wo"],
    }

def reference(A_x, A_wqkv, A_wo, B_x, B_wq, B_wk, B_wv, B_wo):
    def _A_ref(x, wqkv, wo):
        B, S, D = x.shape
        H = 32; Dh = D // H; W = 256
        qkv = (lambda x, *d: x.permute(*d))((x @ wqkv).reshape(B, S, 3, H, Dh), 2, 0, 3, 1, 4)
        q, k, v = qkv[0], qkv[1], qkv[2]
        scores = torch.einsum("bhqd,bhkd->bhqk", q, k) * (Dh ** -0.5)
        idx = torch.arange(S)
        mask = (idx[:, None] - idx[None, :] >= 0) & (idx[:, None] - idx[None, :] < W)
        scores = torch.where(mask[None, None], scores, -1e9)
        p = _softmax(scores, axis=-1)
        o = torch.einsum("bhqk,bhkd->bhqd", p, v)
        return (lambda x, *d: x.permute(*d))(o, 0, 2, 1, 3).reshape(B, S, D) @ wo

    def _B_ref(x, wq, wk, wv, wo):
        B, S, D = x.shape
        H = 32
        Dh = D // H
        q = (lambda x, *d: x.permute(*d))((x @ wq).reshape(B, S, H, Dh), 0, 2, 1, 3)
        k = x @ wk
        v = x @ wv
        scores = torch.einsum("bhqd,bkd->bhqk", q, k) * (Dh ** -0.5)
        p = _softmax(scores, axis=-1)
        o = torch.einsum("bhqk,bkd->bhqd", p, v)
        return (lambda x, *d: x.permute(*d))(o, 0, 2, 1, 3).reshape(B, S, H * Dh) @ wo

    a = _A_ref(A_x, A_wqkv, A_wo)
    b = _B_ref(B_x, B_wq, B_wk, B_wv, B_wo)
    return torch.concatenate([a, b], axis=-1)
```

```python
import struct


def v(i, n=1):
    return f"v{i}" if n == 1 else f"v[{i}:{i+n-1}]"


def s(i, n=1):
    return f"s{i}" if n == 1 else f"s[{i}:{i+n-1}]"


def f2u(x):
    return struct.unpack("<I", struct.pack("<f", x))[0]


def hexf(x):
    return f"0x{f2u(x):08x}"


class Asm:
    def __init__(self):
        self.lines = []
        self.uid = 0

    def __call__(self, *ls):
        for l in ls:
            for q in l.split("\n"):
                q = q.strip()
                if q:
                    self.lines.append(("" if q.endswith(":") else "    ") + q)

    def c(self, text):
        self.lines.append("    ; " + text)

    def label(self, name):
        self.lines.append(name + ":")

    def new(self, stem):
        self.uid += 1
        return f"{stem}_{self.uid}"

    def nop(self, n):
        while n > 0:
            k = min(n, 16)
            self(f"s_nop {k-1}")
            n -= k

    def text(self):
        return "\n".join(self.lines) + "\n"

    def srd(self, d, base, nrec):
        if d != base:
            self(f"s_mov_b32 {s(d)}, {s(base)}")
            self(f"s_mov_b32 {s(d+1)}, {s(base+1)}")
        self(f"s_mov_b32 {s(d+2)}, {nrec if isinstance(nrec, str) else hex(nrec)}")
        self(f"s_mov_b32 {s(d+3)}, 0x00020000")


def kernel_desc(name, vgpr, sgpr=102):
    acc = (vgpr + 3) // 4 * 4
    return f""".section .rodata,"a"
.p2align 6
.amdhsa_kernel {name}
  .amdhsa_next_free_vgpr {vgpr}
  .amdhsa_next_free_sgpr {sgpr}
  .amdhsa_accum_offset {acc}
  .amdhsa_group_segment_fixed_size 0
  .amdhsa_kernarg_size 88
  .amdhsa_user_sgpr_count 2
  .amdhsa_user_sgpr_kernarg_segment_ptr 1
  .amdhsa_system_sgpr_workgroup_id_x 1
.end_amdhsa_kernel
"""


def kernel_head(name):
    return f""".globl {name}
.p2align 8
.type {name},@function
{name}:
"""
```

```python
from dsl import *

NAME = "proj_kernel"
SLOT = 53248
LDS = 3 * SLOT
WS_QA, WS_KVA, WS_QB, WS_KVB, WS_OA, WS_OB = 0, 4 << 20, 12 << 20, 16 << 20, 17 << 20, 21 << 20
WS_SIZE = 32 << 20
QSCALE = (32 ** -0.5) * 1.4426950408889634


def gen(stamp=False):
    a = Asm()
    sX, sW, sE, sO = 12, 16, 20, 24
    sx, sj, sbm, sbn, sgrp, sw = 34, 35, 36, 37, 38, 39
    sldw, sT0, sT1, sT2 = 40, 41, 44, 45
    sSC = 42
    sslot, sdelta, scnt = 46, 47, 48
    sLX, sLW, sLE = 49, 50, 51
    sKX, sKW, sKE, sKWstep = 52, 53, 54, 55
    sA, sB = 56, 57
    sbase, shs, sts = 58, 59, 60
    scur = 61
    END = "p1_end"

    a(f"s_cmp_ge_u32 s2, 256")
    a(f"s_cbranch_scc1 {END}")
    a("s_load_dwordx4 s[4:7], s[0:1], 0")
    a("s_load_dwordx4 s[8:11], s[0:1], 24")
    a("s_load_dwordx4 s[28:31], s[0:1], 40")
    a("s_load_dwordx2 s[32:33], s[0:1], 80")
    a(f"v_lshrrev_b32 v1, 6, v0")
    a(f"v_and_b32 v0, 63, v0")
    a(f"v_readfirstlane_b32 {s(sw)}, v1")
    a(f"s_and_b32 {s(sx)}, s2, 7")
    a(f"s_lshr_b32 {s(sj)}, s2, 3")
    a(f"s_and_b32 {s(sT0)}, {s(sx)}, 1")
    a(f"s_lshl_b32 {s(sT0)}, {s(sT0)}, 2")
    a(f"s_and_b32 {s(sbm)}, {s(sj)}, 3")
    a(f"s_add_u32 {s(sbm)}, {s(sbm)}, {s(sT0)}")
    a(f"s_lshr_b32 {s(sbn)}, {s(sj)}, 2")
    a(f"s_lshr_b32 {s(sgrp)}, {s(sx)}, 1")
    a("s_waitcnt lgkmcnt(0)")
    a(f"s_cmp_eq_u32 {s(sgrp)}, 3")
    a(f"s_cselect_b32 {s(sX)}, s8, s4")
    a(f"s_cselect_b32 {s(sX+1)}, s9, s5")
    a(f"s_cselect_b32 {s(sW)}, s10, s6")
    a(f"s_cselect_b32 {s(sW+1)}, s11, s7")
    a(f"s_mov_b32 {s(sT0)}, 6144")
    a(f"s_cselect_b32 {s(sldw)}, 2048, {s(sT0)}")
    a(f"s_mov_b32 {s(sT0)}, {6<<20}")
    a(f"s_cselect_b32 {s(sW+2)}, {2<<20}, {s(sT0)}")
    a(f"s_mov_b32 {s(sX+2)}, {4<<20}")
    a(f"s_mov_b32 {s(sX+3)}, 0x00020000")
    a(f"s_mov_b32 {s(sW+3)}, 0x00020000")
    a(f"s_bitcmp1_b32 {s(sbn)}, 0")
    a(f"s_cselect_b32 {s(sE)}, s30, s28")
    a(f"s_cselect_b32 {s(sE+1)}, s31, s29")
    a(f"s_mov_b32 {s(sE+2)}, 65536")
    a(f"s_mov_b32 {s(sE+3)}, 0x00020000")
    a.srd(sO, 32, WS_SIZE)
    a(f"s_cmp_ge_u32 {s(sw)}, 4")
    a(f"s_cbranch_scc1 p1_loader")

    ACC = 0
    XF = lambda b, tb: 128 + 16 * b + 4 * tb
    WF = lambda b, nb: 160 + 8 * b + 4 * nb
    XA = [176, 177, 178, 179]
    WA = [180, 181]
    VL16 = 182
    t0, t1, t2, t3, t4 = 184, 185, 186, 187, 188
    a(f"v_lshrrev_b32 {v(t0)}, 5, v0")
    a(f"v_and_b32 {v(t1)}, 31, v0")
    a(f"v_lshrrev_b32 {v(t2)}, 1, v0")
    a(f"v_and_b32 {v(t2)}, 7, {v(t2)}")
    a(f"s_and_b32 {s(sT0)}, {s(sw)}, 1")
    a(f"s_lshl_b32 {s(sT0)}, {s(sT0)}, 14")
    a(f"v_lshlrev_b32 {v(t1)}, 7, {v(t1)}")
    a(f"v_add_u32 {v(t1)}, {s(sT0)}, {v(t1)}")
    for j in range(4):
        a(f"v_or_b32 {v(t3)}, {2*j}, {v(t0)}")
        a(f"v_xor_b32 {v(t3)}, {v(t3)}, {v(t2)}")
        a(f"v_lshlrev_b32 {v(t3)}, 4, {v(t3)}")
        a(f"v_add_u32 {v(XA[j])}, {v(t1)}, {v(t3)}")
    a(f"v_lshrrev_b32 {v(t2)}, 2, v0")
    a(f"v_and_b32 {v(t2)}, 3, {v(t2)}")
    a(f"v_lshlrev_b32 {v(t3)}, 3, {v(t0)}")
    a(f"v_add_u32 {v(t3)}, {v(t3)}, {v(t2)}")
    a(f"v_lshlrev_b32 {v(t3)}, 8, {v(t3)}")
    a(f"v_lshrrev_b32 {v(t4)}, 4, v0")
    a(f"v_and_b32 {v(t4)}, 1, {v(t4)}")
    a(f"v_lshlrev_b32 {v(t4)}, 5, {v(t4)}")
    a(f"v_add_u32 {v(t3)}, {v(t3)}, {v(t4)}")
    a(f"v_and_b32 {v(t4)}, 3, v0")
    a(f"v_lshlrev_b32 {v(t4)}, 3, {v(t4)}")
    a(f"v_add_u32 {v(t3)}, {v(t3)}, {v(t4)}")
    a(f"v_add_u32 {v(t3)}, 32768, {v(t3)}")
    a(f"s_lshr_b32 {s(sT0)}, {s(sw)}, 1")
    a(f"s_lshl_b32 {s(sT0)}, {s(sT0)}, 1")
    for nb in range(2):
        a(f"s_add_u32 {s(sT1)}, {s(sT0)}, {nb}")
        a(f"v_xor_b32 {v(t4)}, {s(sT1)}, {v(t2)}")
        a(f"v_lshlrev_b32 {v(t4)}, 6, {v(t4)}")
        a(f"v_add_u32 {v(WA[nb])}, {v(t3)}, {v(t4)}")
    a(f"v_lshlrev_b32 {v(VL16)}, 4, v0")
    for r in range(128):
        a(f"v_mov_b32 {v(ACC+r)}, 0")
    a(f"s_mov_b32 {s(sslot)}, 0")
    a(f"s_mov_b32 {s(scnt)}, 16")

    def reads(b, j):
        W = lambda nb, p: f"ds_read_b64_tr_b16 {v(WF(b, nb)+2*p, 2)}, {v(WA[nb])} offset:{(16*j+4*p)*256}"
        X = lambda tb: f"ds_read_b128 {v(XF(b, tb), 4)}, {v(XA[j])} offset:{tb*4096}"
        return [[W(0, 0), W(0, 1), X(0)], [W(1, 0), W(1, 1), X(1)], [X(2), X(3)]]

    def mfma(b, tb, nb, vt):
        d = v(ACC + 16 * (2 * tb + nb), 16)
        x, w = v(XF(b, tb), 4), v(WF(b, nb), 4)
        A, B = (x, w) if vt else (w, x)
        return f"v_mfma_f32_32x32x16_bf16 {d}, {A}, {B}, {d}"

    def mainloop(vt, tag):
        a("s_barrier")
        for g in reads(0, 0):
            a(*g)
        a.label(f"p1_loop_{tag}")
        for j in range(4):
            b = j & 1
            a("s_waitcnt lgkmcnt(0)")
            ms = [mfma(b, tb, nb, vt) for tb in range(4) for nb in range(2)]
            if j < 3:
                rd = reads(b ^ 1, j + 1)
                for i, m in enumerate(ms):
                    a(m)
                    if i < 3:
                        a(*rd[i])
            else:
                a(ms[0])
                a(f"s_add_u32 {s(sslot)}, {s(sslot)}, {SLOT}")
                a(f"s_mov_b32 {s(sdelta)}, {SLOT}")
                a(f"s_cmp_eq_u32 {s(sslot)}, {3*SLOT}")
                a(f"s_cselect_b32 {s(sdelta)}, {(-2*SLOT) & 0xffffffff}, {s(sdelta)}")
                a(f"s_cselect_b32 {s(sslot)}, 0, {s(sslot)}")
                for r in XA + WA:
                    a(f"v_add_u32 {v(r)}, {s(sdelta)}, {v(r)}")
                a("s_barrier")
                rd = reads(0, 0)
                for i, m in enumerate(ms[1:]):
                    if i < 3:
                        a(*rd[i])
                    a(m)
        a(f"s_sub_u32 {s(scnt)}, {s(scnt)}, 1")
        a(f"s_cmp_lg_u32 {s(scnt)}, 0")
        a(f"s_cbranch_scc1 p1_loop_{tag}")

    a(f"s_cmp_eq_u32 {s(sgrp)}, 2")
    a("s_cbranch_scc1 p1_vtype")
    mainloop(False, "q")
    a("s_branch p1_epi")
    a.label("p1_vtype")
    mainloop(True, "v")
    a.label("p1_epi")
    a("s_waitcnt lgkmcnt(0)")
    a(f"s_mov_b32 {s(sbase)}, {WS_QA}")
    a(f"s_cmp_eq_u32 {s(sgrp)}, 1")
    a(f"s_cselect_b32 {s(sbase)}, {WS_KVA}, {s(sbase)}")
    a(f"s_cmp_eq_u32 {s(sgrp)}, 2")
    a(f"s_cselect_b32 {s(sbase)}, {WS_KVA+2048}, {s(sbase)}")
    a(f"s_cmp_eq_u32 {s(sgrp)}, 3")
    a(f"s_cselect_b32 {s(sbase)}, {WS_QB}, {s(sbase)}")
    a(f"s_add_u32 {s(sT0)}, {s(sgrp)}, 1")
    a(f"s_and_b32 {s(sT0)}, {s(sT0)}, 2")
    a(f"s_cmp_eq_u32 {s(sT0)}, 0")
    a(f"s_mov_b32 {s(sT1)}, 262144")
    a(f"s_cselect_b32 {s(shs)}, 131072, {s(sT1)}")
    a(f"s_mov_b32 {s(sT1)}, 4096")
    a(f"s_cselect_b32 {s(sts)}, 2048, {s(sT1)}")
    a(f"s_mov_b32 {s(sT1)}, 1.0")
    a(f"s_cselect_b32 {s(sSC)}, {hexf(QSCALE)}, {s(sT1)}")
    a(f"s_mov_b32 {s(sSC+1)}, {s(sSC)}")
    a(f"s_lshl_b32 {s(sT0)}, {s(sbn)}, 2")
    a(f"s_and_b32 {s(sT1)}, {s(sw)}, 2")
    a(f"s_add_u32 {s(sT0)}, {s(sT0)}, {s(sT1)}")
    a(f"s_mul_i32 {s(sT0)}, {s(sT0)}, {s(shs)}")
    a(f"s_add_u32 {s(sbase)}, {s(sbase)}, {s(sT0)}")
    a(f"s_lshl_b32 {s(sT0)}, {s(sbm)}, 3")
    a(f"s_and_b32 {s(sT1)}, {s(sw)}, 1")
    a(f"s_lshl_b32 {s(sT1)}, {s(sT1)}, 2")
    a(f"s_add_u32 {s(sT0)}, {s(sT0)}, {s(sT1)}")
    a(f"s_mul_i32 {s(sT0)}, {s(sT0)}, {s(sts)}")
    a(f"s_add_u32 {s(sbase)}, {s(sbase)}, {s(sT0)}")
    a.nop(8)
    for tb in range(4):
        for nb in range(2):
            b = ACC + 16 * (2 * tb + nb)
            for r in range(0, 16, 2):
                a(f"v_pk_mul_f32 {v(b+r,2)}, {v(b+r,2)}, {s(sSC,2)}")
            for h in range(2):
                for i in range(4):
                    a(f"v_cvt_pk_bf16_f32 {v(b+8*h+i)}, {v(b+8*h+2*i)}, {v(b+8*h+2*i+1)}")
            if nb == 0:
                a(f"s_mul_i32 {s(sT0)}, {s(sts)}, {tb}")
                a(f"s_add_u32 {s(sT0)}, {s(sT0)}, {s(sbase)}")
            else:
                a(f"s_add_u32 {s(sT0)}, {s(sT0)}, {s(shs)}")
            for h in range(2):
                a(f"buffer_store_dwordx4 {v(b+8*h,4)}, {v(VL16)}, {s(sO,4)}, {s(sT0)} offen offset:{h*1024}")
    a("s_endpgm")

    a.label("p1_loader")
    VX = [1, 2, 3, 4, 5, 6, 7, 8]
    VW = [9, 10, 11, 12]
    VE = 13
    EX = [14, 15]
    EA = 16
    TX = [17, 18]
    TA = 19
    L16 = 20
    t0, t1, t2, t3, t4 = 24, 25, 26, 27, 28
    EACC = 32
    EF = lambda jj: 48 + 8 * jj
    slw = sw
    a(f"s_sub_u32 {s(slw)}, {s(sw)}, 4")
    a(f"s_lshl_b32 {s(sT0)}, {s(sbm)}, 8")
    a(f"s_lshl_b32 {s(sT1)}, {s(slw)}, 6")
    a(f"s_add_u32 {s(sT0)}, {s(sT0)}, {s(sT1)}")
    a(f"v_lshrrev_b32 {v(t0)}, 3, v0")
    a(f"v_add_u32 {v(t0)}, {s(sT0)}, {v(t0)}")
    a(f"v_lshlrev_b32 {v(t0)}, 11, {v(t0)}")
    a(f"v_and_b32 {v(t1)}, 7, v0")
    a(f"v_lshrrev_b32 {v(t2)}, 4, v0")
    a(f"v_xor_b32 {v(t1)}, {v(t1)}, {v(t2)}")
    for i in range(8):
        a(f"v_xor_b32 {v(t3)}, {4*(i&1)}, {v(t1)}")
        a(f"v_lshlrev_b32 {v(t3)}, 4, {v(t3)}")
        a(f"v_add_u32 {v(t3)}, {v(t3)}, {v(t0)}")
        a(f"v_add_u32 {v(VX[i])}, {i*8*2048}, {v(t3)}")
    a(f"s_lshl_b32 {s(sT0)}, {s(slw)}, 4")
    a(f"v_add_u32 {v(t0)}, {s(sT0)}, {v(t2)}")
    a(f"v_mul_lo_u32 {v(t0)}, {v(t0)}, {s(sldw)}")
    a(f"v_lshrrev_b32 {v(t1)}, 2, v0")
    a(f"v_and_b32 {v(t1)}, 3, {v(t1)}")
    a(f"v_xor_b32 {v(t1)}, {v(t1)}, {v(t2)}")
    a(f"v_lshlrev_b32 {v(t1)}, 6, {v(t1)}")
    a(f"v_add_u32 {v(t0)}, {v(t0)}, {v(t1)}")
    a(f"v_and_b32 {v(t1)}, 3, v0")
    a(f"v_lshlrev_b32 {v(t1)}, 4, {v(t1)}")
    a(f"v_add_u32 {v(t0)}, {v(t0)}, {v(t1)}")
    a(f"s_lshl_b32 {s(sT0)}, {s(sgrp)}, 11")
    a(f"s_cmp_eq_u32 {s(sgrp)}, 3")
    a(f"s_cselect_b32 {s(sT0)}, 0, {s(sT0)}")
    a(f"s_lshl_b32 {s(sT1)}, {s(sbn)}, 8")
    a(f"s_add_u32 {s(sT0)}, {s(sT0)}, {s(sT1)}")
    a(f"v_add_u32 {v(t0)}, {s(sT0)}, {v(t0)}")
    a(f"s_lshl_b32 {s(sT1)}, {s(sldw)}, 2")
    for i in range(4):
        if i == 0:
            a(f"v_mov_b32 {v(VW[0])}, {v(t0)}")
        else:
            a(f"v_add_u32 {v(VW[i])}, {s(sT1)}, {v(VW[i-1])}")
    a(f"v_lshlrev_b32 {v(L16)}, 4, v0")
    a(f"s_lshl_b32 {s(sT0)}, {s(slw)}, 10")
    a(f"v_add_u32 {v(VE)}, {s(sT0)}, {v(L16)}")
    a(f"s_lshl_b32 {s(sLX)}, {s(slw)}, 13")
    a(f"s_lshl_b32 {s(sLW)}, {s(slw)}, 12")
    a(f"s_add_u32 {s(sLW)}, {s(sLW)}, 32768")
    a(f"s_lshl_b32 {s(sLE)}, {s(slw)}, 10")
    a(f"s_add_u32 {s(sLE)}, {s(sLE)}, 49152")
    a(f"s_lshl_b32 {s(sKWstep)}, {s(sldw)}, 6")
    a(f"s_mov_b32 {s(sKX)}, 0")
    a(f"s_mov_b32 {s(sKW)}, 0")
    a(f"s_mov_b32 {s(sKE)}, 0")
    a(f"s_mov_b32 {s(sslot)}, 0")

    def issue(E):
        a(f"s_add_u32 {s(sA)}, {s(sslot)}, {s(sLX)}")
        a(f"s_add_u32 {s(sB)}, {s(sslot)}, {s(sLW)}")
        for i in range(4):
            a(f"s_add_u32 m0, {s(sB)}, {i*1024}")
            a("s_nop 0")
            a(f"buffer_load_dwordx4 {v(VW[i])}, {s(sW,4)}, {s(sKW)} offen lds")
        for i in range(8):
            a(f"s_add_u32 m0, {s(sA)}, {i*1024}")
            a("s_nop 0")
            a(f"buffer_load_dwordx4 {v(VX[i])}, {s(sX,4)}, {s(sKX)} offen lds")
        if E:
            a(f"s_add_u32 m0, {s(sslot)}, {s(sLE)}")
            a("s_nop 0")
            a(f"buffer_load_dwordx4 {v(VE)}, {s(sE,4)}, {s(sKE)} offen lds")
            a(f"s_add_u32 {s(sKE)}, {s(sKE)}, 4096")
        a(f"s_add_u32 {s(sKX)}, {s(sKX)}, 128")
        a(f"s_add_u32 {s(sKW)}, {s(sKW)}, {s(sKWstep)}")
        a(f"s_add_u32 {s(sslot)}, {s(sslot)}, {SLOT}")
        a(f"s_cmp_eq_u32 {s(sslot)}, {3*SLOT}")
        a(f"s_cselect_b32 {s(sslot)}, 0, {s(sslot)}")

    def ework(E):
        if not E:
            return
        for jj in range(2):
            a(f"v_add_u32 {v(TX[jj])}, {s(scur)}, {v(EX[jj])}")
        a(f"v_add_u32 {v(TA)}, {s(scur)}, {v(EA)}")
        for jj in range(2):
            a(f"ds_read_b128 {v(EF(jj),4)}, {v(TX[jj])}")
            for p in range(2):
                a(f"ds_read_b64_tr_b16 {v(EF(jj)+4+2*p,2)}, {v(TA)} offset:{(16*jj+4*p)*64}")
        a(f"s_add_u32 {s(scur)}, {s(scur)}, {SLOT}")
        a(f"s_cmp_eq_u32 {s(scur)}, {3*SLOT}")
        a(f"s_cselect_b32 {s(scur)}, 0, {s(scur)}")
        a("s_waitcnt lgkmcnt(0)")
        for jj in range(2):
            x, w = v(EF(jj), 4), v(EF(jj) + 4, 4)
            A, B = (x, w) if E == "v" else (w, x)
            a(f"v_mfma_f32_32x32x16_bf16 {v(EACC,16)}, {A}, {B}, {v(EACC,16)}")

    def loader(E, tag):
        NI = 13 if E else 12
        issue(E)
        issue(E)
        issue(E)
        if E:
            a(f"s_lshr_b32 {s(sT0)}, {s(sbn)}, 1")
            a(f"s_lshl_b32 {s(sT0)}, {s(sT0)}, 1")
            a(f"s_and_b32 {s(sT1)}, {s(slw)}, 1")
            a(f"s_add_u32 {s(sT0)}, {s(sT0)}, {s(sT1)}")
            a(f"s_lshl_b32 {s(sT2)}, {s(sT0)}, 12")
            a(f"v_and_b32 {v(t0)}, 31, v0")
            a(f"v_lshlrev_b32 {v(t0)}, 7, {v(t0)}")
            a(f"v_add_u32 {v(t0)}, {s(sT2)}, {v(t0)}")
            a(f"v_lshrrev_b32 {v(t1)}, 5, v0")
            a(f"v_lshrrev_b32 {v(t2)}, 1, v0")
            a(f"v_and_b32 {v(t2)}, 7, {v(t2)}")
            a(f"s_and_b32 {s(sT1)}, {s(slw)}, 2")
            a(f"s_lshl_b32 {s(sT1)}, {s(sT1)}, 1")
            for jj in range(2):
                a(f"s_add_u32 {s(sT2)}, {s(sT1)}, {2*jj}")
                a(f"v_or_b32 {v(t3)}, {s(sT2)}, {v(t1)}")
                a(f"v_xor_b32 {v(t3)}, {v(t3)}, {v(t2)}")
                a(f"v_lshlrev_b32 {v(t3)}, 4, {v(t3)}")
                a(f"v_add_u32 {v(EX[jj])}, {v(t0)}, {v(t3)}")
            a(f"v_lshlrev_b32 {v(t3)}, 3, {v(t1)}")
            a(f"v_lshrrev_b32 {v(t2)}, 2, v0")
            a(f"v_and_b32 {v(t2)}, 3, {v(t2)}")
            a(f"v_add_u32 {v(t3)}, {v(t3)}, {v(t2)}")
            a(f"v_lshlrev_b32 {v(t3)}, 6, {v(t3)}")
            a(f"v_lshrrev_b32 {v(t2)}, 4, v0")
            a(f"v_and_b32 {v(t2)}, 1, {v(t2)}")
            a(f"v_lshlrev_b32 {v(t2)}, 5, {v(t2)}")
            a(f"v_add_u32 {v(t3)}, {v(t3)}, {v(t2)}")
            a(f"v_and_b32 {v(t2)}, 3, v0")
            a(f"v_lshlrev_b32 {v(t2)}, 3, {v(t2)}")
            a(f"v_add_u32 {v(t3)}, {v(t3)}, {v(t2)}")
            a(f"s_lshl_b32 {s(sT1)}, {s(sT1)}, 9")
            a(f"s_add_u32 {s(sT1)}, {s(sT1)}, 49152")
            a(f"v_add_u32 {v(EA)}, {s(sT1)}, {v(t3)}")
            for r in range(16):
                a(f"v_mov_b32 {v(EACC+r)}, 0")
            a(f"s_mov_b32 {s(scur)}, 0")
        a(f"s_waitcnt vmcnt({2*NI})")
        a("s_barrier")
        ework(E)
        a(f"s_mov_b32 {s(scnt)}, 13")
        a.label(f"p1_lloop_{tag}")
        a(f"s_waitcnt vmcnt({NI})")
        a("s_barrier")
        issue(E)
        ework(E)
        a(f"s_sub_u32 {s(scnt)}, {s(scnt)}, 1")
        a(f"s_cmp_lg_u32 {s(scnt)}, 0")
        a(f"s_cbranch_scc1 p1_lloop_{tag}")
        a(f"s_waitcnt vmcnt({NI})")
        a("s_barrier")
        ework(E)
        a("s_waitcnt vmcnt(0)")
        a("s_barrier")
        ework(E)
        if E:
            a.nop(16)
            a(f"s_and_b32 {s(sT1)}, {s(slw)}, 1")
            a(f"s_lshl_b32 {s(sT1)}, {s(sT1)}, 12")
            a(f"s_add_u32 {s(sT1)}, {s(sT1)}, {SLOT}")
            a(f"v_add_u32 {v(t0)}, {s(sT1)}, {v(L16)}")
            a(f"s_cmp_lt_u32 {s(slw)}, 2")
            a(f"s_cbranch_scc1 p1_nopub_{tag}")
            for i in range(4):
                a(f"ds_write_b128 {v(t0)}, {v(EACC+4*i,4)} offset:{i*1024}")
            a("s_waitcnt lgkmcnt(0)")
            a.label(f"p1_nopub_{tag}")
        a("s_barrier")
        if E:
            a(f"s_cmp_ge_u32 {s(slw)}, 2")
            a(f"s_cbranch_scc1 p1_ldone_{tag}")
            for i in range(4):
                a(f"ds_read_b128 {v(48+4*i,4)}, {v(t0)} offset:{i*1024}")
            a("s_waitcnt lgkmcnt(0)")
            for r in range(16):
                a(f"v_add_f32 {v(EACC+r)}, {v(EACC+r)}, {v(48+r)}")
            for h in range(2):
                for i in range(4):
                    a(f"v_cvt_pk_bf16_f32 {v(EACC+8*h+i)}, {v(EACC+8*h+2*i)}, {v(EACC+8*h+2*i+1)}")
            a(f"s_lshr_b32 {s(sT0)}, {s(sbn)}, 1")
            a(f"s_lshl_b32 {s(sT0)}, {s(sT0)}, 1")
            a(f"s_add_u32 {s(sT0)}, {s(sT0)}, {s(slw)}")
            a(f"s_lshl_b32 {s(sT1)}, {s(sbm)}, 3")
            a(f"s_add_u32 {s(sT0)}, {s(sT0)}, {s(sT1)}")
            a(f"s_lshl_b32 {s(sT0)}, {s(sT0)}, 12")
            a(f"s_add_u32 {s(sT0)}, {s(sT0)}, {WS_KVB + (2048 if E == 'v' else 0)}")
            for h in range(2):
                a(f"buffer_store_dwordx4 {v(EACC+8*h,4)}, {v(L16)}, {s(sO,4)}, {s(sT0)} offen offset:{h*1024}")
            a.label(f"p1_ldone_{tag}")
        a("s_endpgm")

    a(f"s_cmp_eq_u32 {s(sgrp)}, 3")
    a("s_cbranch_scc1 p1_lE")
    loader(None, "n")
    a.label("p1_lE")
    a(f"s_bitcmp1_b32 {s(sbn)}, 0")
    a("s_cbranch_scc1 p1_lEv")
    loader("k", "k")
    a.label("p1_lEv")
    loader("v", "v")
    a.label(END)
    a("s_endpgm")
    return a.text()
```

```python
from dsl import *
from p1 import WS_QA, WS_KVA, WS_QB, WS_KVB, WS_OA, WS_OB, WS_SIZE

NAME = "attn_kernel"
LDS = 163840
AREG = 98304
NEGINF = "0xff800000"

Q = 4
C = 16
S = [32, 48]
P = [64, 72]
O = 80
L = 96
SA = 100
SI = 104
K0, K1, V0, V1 = 108, 112, 116, 120
VCUR, VNXT, VA, L16 = 124, 125, 126, 127
QA = 128
VD, VDA0, VDA1 = 136, 137, 138
VNEG = 139
T0, T1, T2, T3 = 140, 141, 142, 143
NVGPR = 144

sWS, sKA = 8, 12
sh, sqb, sw, st = 16, 17, 18, 19
sT0, sT1, sT2 = 20, 21, 22
scnt, sslot, schunk = 23, 24, 25
sOFF, sSTEP, sN = 26, 27, 28
sM = 32
sCHK = 64
sD = 66
snxt = 67


def exp(b, i):
    return f"v_exp_f32 {v(S[b]+i)}, {v(S[b]+i)}"


def cvt(b, i):
    return f"v_cvt_pk_bf16_f32 {v(P[b]+i)}, {v(S[b]+2*i)}, {v(S[b]+2*i+1)}"


def qk1(b, c=None):
    c = v(C, 16) if c is None else c
    return f"v_mfma_f32_32x32x16_bf16 {v(S[b],16)}, {v(K0,4)}, {v(Q,4)}, {c}"


def qk2(b):
    return f"v_mfma_f32_32x32x16_bf16 {v(S[b],16)}, {v(K1,4)}, {v(Q+4,4)}, {v(S[b],16)}"


def pv0(b):
    return f"v_mfma_f32_32x32x16_bf16 {v(O,16)}, {v(V0,4)}, {v(P[b],4)}, {v(O,16)}"


def pv1(b):
    return f"v_mfma_f32_32x32x16_bf16 {v(O,16)}, {v(V1,4)}, {v(P[b]+4,4)}, {v(O,16)}"


def rsum(b):
    return f"v_smfmac_f32_16x16x64_bf16 {v(L,4)}, {v(SA,4)}, {v(P[b],8)}, {v(SI)}"


def rd(dst, addr):
    reg, off = addr
    return f"ds_read_b128 {v(dst,4)}, {v(reg)} offset:{off}"


def step(a, j, kaddr, vaddr, pre_qk=None, pre_kread=None, last=False, w5=3):
    b = j & 1
    a("s_waitcnt lgkmcnt(1)")
    a(exp(b, 0), exp(b, 1))
    a(pv1(b ^ 1))
    x = vaddr(j, 1)
    if x: a(rd(V1, x))
    a(exp(b, 2), exp(b, 3), exp(b, 4))
    if not last:
        if pre_qk: pre_qk()
        a(qk1(b ^ 1))
    if pre_kread: pre_kread()
    x = kaddr(j + 2, 0)
    if x: a(rd(K0, x))
    a(exp(b, 5), exp(b, 6), exp(b, 7))
    if not last:
        a(qk2(b ^ 1))
    x = kaddr(j + 2, 1)
    if x: a(rd(K1, x))
    a(cvt(b, 0), cvt(b, 1), cvt(b, 2), cvt(b, 3))
    a(exp(b, 8), exp(b, 9))
    a(f"s_waitcnt lgkmcnt({w5})")
    a(pv0(b))
    x = vaddr(j + 1, 0)
    if x: a(rd(V0, x))
    a(exp(b, 10), exp(b, 11))
    a(rsum(b ^ 1))
    a(exp(b, 12), exp(b, 13), exp(b, 14), exp(b, 15))
    a(cvt(b, 4), cvt(b, 5), cvt(b, 6), cvt(b, 7))


def first_max(a):
    s0 = S[0]
    a(f"v_max3_f32 {v(T0)}, {v(s0)}, {v(s0+1)}, {v(s0+2)}")
    for r in range(3, 15, 2):
        a(f"v_max3_f32 {v(T0)}, {v(T0)}, {v(s0+r)}, {v(s0+r+1)}")
    a(f"v_max_f32 {v(T0)}, {v(T0)}, {v(s0+15)}")
    cross_max(a)
    a(f"v_sub_f32 {v(C)}, 0, {v(T0)}")
    for r in range(1, 16):
        a(f"v_mov_b32 {v(C+r)}, {v(C)}")
    for r in range(16):
        a(f"v_add_f32 {v(s0+r)}, {v(s0+r)}, {v(C)}")


def cross_max(a):
    a(f"v_mov_b32 {v(T1)}, {v(T0)}")
    a.nop(2)
    a(f"v_permlane32_swap_b32 {v(T0)}, {v(T1)}")
    a.nop(2)
    a(f"v_max_f32 {v(T0)}, {v(T0)}, {v(T1)}")


def zero_state(a):
    for r in range(16):
        a(f"v_mov_b32 {v(O+r)}, 0")
    for r in range(4):
        a(f"v_mov_b32 {v(L+r)}, 0")
        a(f"v_mov_b32 {v(V1+r)}, 0")
    for r in range(8):
        a(f"v_mov_b32 {v(P[1]+r)}, 0")


def slow_path(a, isA, tag):
    def cbase(val_is_zero):
        if not isA:
            for r in range(16):
                a(f"v_mov_b32 {v(C+r)}, {v(T2)}")
            return
        l0, l8, ld = a.new("sp_d0"), a.new("sp_d8"), a.new("sp_dd")
        a(f"s_cmp_eq_u32 {s(sD)}, 0")
        a(f"s_cbranch_scc1 {l0}")
        a(f"s_cmp_eq_u32 {s(sD)}, 8")
        a(f"s_cbranch_scc1 {l8}")
        for r in range(16):
            a(f"v_mov_b32 {v(C+r)}, {v(T2)}")
        a(f"s_branch {ld}")
        a.label(l0)
        for r in range(16):
            a(f"v_cndmask_b32 {v(C+r)}, {v(VNEG)}, {v(T2)}, {s(sM+2*r,2)}")
        a(f"s_branch {ld}")
        a.label(l8)
        for r in range(16):
            a(f"v_cndmask_b32 {v(C+r)}, {v(T2)}, {v(VNEG)}, {s(sM+2*r,2)}")
        a.label(ld)

    a(f"v_mov_b32 {v(T3)}, {v(VNEG)}")
    a(f"v_mov_b32 {v(T2)}, 0")
    a(f"s_mov_b32 {s(sD)}, 0")
    a(f"s_mov_b32 {s(sT2)}, {s(sOFF)}")
    l1 = a.new("sp_p1")
    a.label(l1)
    a(f"buffer_load_dwordx4 {v(K0,4)}, {v(L16)}, {s(sWS,4)}, {s(sT2)} offen")
    a(f"buffer_load_dwordx4 {v(K1,4)}, {v(L16)}, {s(sWS,4)}, {s(sT2)} offen offset:1024")
    cbase(True)
    a("s_waitcnt vmcnt(0)")
    a.nop(2)
    a(qk1(0), qk2(0))
    a.nop(16)
    for r in range(0, 16, 2):
        a(f"v_max3_f32 {v(T3)}, {v(T3)}, {v(S[0]+r)}, {v(S[0]+r+1)}")
    a(f"s_add_u32 {s(sT2)}, {s(sT2)}, {s(sSTEP)}")
    a(f"s_add_u32 {s(sD)}, {s(sD)}, 1")
    a(f"s_cmp_lt_u32 {s(sD)}, {s(sN)}")
    a(f"s_cbranch_scc1 {l1}")
    a(f"v_mov_b32 {v(T0)}, {v(T3)}")
    cross_max(a)
    a(f"v_sub_f32 {v(T2)}, 0, {v(T0)}")
    for r in range(16):
        a(f"v_mov_b32 {v(O+r)}, 0")
    for r in range(4):
        a(f"v_mov_b32 {v(L+r)}, 0")
    a(f"s_mov_b32 {s(sD)}, 0")
    a(f"s_mov_b32 {s(sT2)}, {s(sOFF)}")
    l2 = a.new("sp_p2")
    a.label(l2)
    a(f"buffer_load_dwordx4 {v(K0,4)}, {v(L16)}, {s(sWS,4)}, {s(sT2)} offen")
    a(f"buffer_load_dwordx4 {v(K1,4)}, {v(L16)}, {s(sWS,4)}, {s(sT2)} offen offset:1024")
    a(f"buffer_load_dwordx4 {v(V0,4)}, {v(L16)}, {s(sWS,4)}, {s(sT2)} offen offset:2048")
    a(f"buffer_load_dwordx4 {v(V1,4)}, {v(L16)}, {s(sWS,4)}, {s(sT2)} offen offset:3072")
    cbase(False)
    a("s_waitcnt vmcnt(0)")
    a.nop(2)
    a(qk1(0), qk2(0))
    a.nop(16)
    for r in range(16):
        a(exp(0, r))
    a.nop(1)
    for r in range(8):
        a(cvt(0, r))
    a.nop(2)
    a(pv0(0), pv1(0), rsum(0))
    a.nop(16)
    a(f"s_add_u32 {s(sT2)}, {s(sT2)}, {s(sSTEP)}")
    a(f"s_add_u32 {s(sD)}, {s(sD)}, 1")
    a(f"s_cmp_lt_u32 {s(sD)}, {s(sN)}")
    a(f"s_cbranch_scc1 {l2}")
    a.nop(16)
    a(f"v_add_f32 {v(T0)}, {v(L)}, {v(L+1)}")


def finish(a, isA, tag, force_slow=False):
    slow, norm = f"p2_slow_{tag}", f"p2_norm_{tag}"
    a.nop(12)
    a(f"v_add_f32 {v(T0)}, {v(L)}, {v(L+1)}")
    a(f"v_mov_b32 {v(T1)}, {hexf(2.0**40)}")
    a(f"v_cmp_nlt_f32 vcc, {v(T0)}, {v(T1)}")
    a.nop(2)
    if force_slow:
        a(f"s_branch {slow}")
    else:
        a(f"s_cbranch_vccnz {slow}")
    a.label(norm)
    a(f"v_rcp_f32 {v(T1)}, {v(T0)}")
    a.nop(1)
    for r in range(16):
        a(f"v_mul_f32 {v(O+r)}, {v(O+r)}, {v(T1)}")
    for h in range(2):
        for i in range(4):
            a(f"v_cvt_pk_bf16_f32 {v(O+8*h+i)}, {v(O+8*h+2*i)}, {v(O+8*h+2*i+1)}")
    a(f"s_lshl_b32 {s(sT0)}, {s(st)}, 16")
    a(f"s_lshl_b32 {s(sT1)}, {s(sh)}, 11")
    a(f"s_add_u32 {s(sT0)}, {s(sT0)}, {s(sT1)}")
    a(f"s_add_u32 {s(sT0)}, {s(sT0)}, {WS_OA if isA else WS_OB}")
    for h in range(2):
        a(f"buffer_store_dwordx4 {v(O+8*h,4)}, {v(L16)}, {s(sWS,4)}, {s(sT0)} offen offset:{h*1024}")
    return slow, norm


def gen(force_slow=False):
    a = Asm()
    END = "p2_end"
    a("s_cmp_ge_u32 s2, 256")
    a(f"s_cbranch_scc1 {END}")
    a("s_load_dwordx2 s[4:5], s[0:1], 80")
    a("v_lshrrev_b32 v1, 6, v0")
    a("v_and_b32 v0, 63, v0")
    a(f"v_readfirstlane_b32 {s(sw)}, v1")
    a(f"s_and_b32 {s(sh)}, s2, 31")
    a(f"s_lshr_b32 {s(sqb)}, s2, 5")
    a(f"v_lshlrev_b32 {v(L16)}, 4, v0")
    a(f"s_lshl_b32 {s(st)}, {s(sqb)}, 3")
    a(f"s_add_u32 {s(st)}, {s(st)}, {s(sw)}")
    a(f"s_lshl_b32 {s(sT0)}, {s(sw)}, 12")
    a(f"v_add_u32 {v(VD)}, {s(sT0)}, {v(L16)}")
    a("s_waitcnt lgkmcnt(0)")
    a.srd(sWS, 4, WS_SIZE)
    a(f"s_lshl_b32 {s(sT0)}, {s(sh)}, 18")
    a(f"s_add_u32 {s(sT0)}, {s(sT0)}, {WS_KVA}")
    a(f"s_add_u32 {s(sKA)}, s4, {s(sT0)}")
    a(f"s_addc_u32 {s(sKA+1)}, s5, 0")
    a(f"s_mov_b32 {s(sKA+2)}, 262144")
    a(f"s_mov_b32 {s(sKA+3)}, 0x00020000")
    a(f"s_lshl_b32 {s(sT0)}, {s(sh)}, 17")
    a(f"s_lshl_b32 {s(sT1)}, {s(st)}, 11")
    a(f"s_add_u32 {s(sT2)}, {s(sT0)}, {s(sT1)}")
    a(f"s_add_u32 {s(sT0)}, {s(sT2)}, {WS_QB}")
    a(f"buffer_load_dwordx4 {v(Q,4)}, {v(L16)}, {s(sWS,4)}, {s(sT0)} offen")
    a(f"buffer_load_dwordx4 {v(Q+4,4)}, {v(L16)}, {s(sWS,4)}, {s(sT0)} offen offset:1024")

    def dma_chunk(slot_off, soff):
        a(f"s_lshl_b32 {s(sT1)}, {s(sw)}, 12")
        a(f"s_add_u32 m0, {s(sT1)}, {slot_off}")
        a("s_nop 0")
        for i in range(4):
            a(f"buffer_load_dwordx4 {v(VD)}, {s(sWS,4)}, {soff} offen offset:{i*1024} lds")

    a(f"s_mov_b32 {s(schunk)}, {WS_KVB}")
    dma_chunk(0, s(schunk))
    a(f"s_add_u32 {s(schunk)}, {s(schunk)}, 32768")
    dma_chunk(32768, s(schunk))
    a(f"s_add_u32 {s(schunk)}, {s(schunk)}, 32768")
    a(f"s_add_u32 {s(sT0)}, {s(sT2)}, {WS_QA}")
    a(f"buffer_load_dwordx4 {v(QA,4)}, {v(L16)}, {s(sWS,4)}, {s(sT0)} offen")
    a(f"buffer_load_dwordx4 {v(QA+4,4)}, {v(L16)}, {s(sWS,4)}, {s(sT0)} offen offset:1024")
    a(f"s_lshl_b32 {s(sT0)}, {s(sqb)}, 15")
    a(f"s_sub_u32 {s(sT0)}, {s(sT0)}, 32768")
    a(f"s_lshl_b32 {s(sT1)}, {s(sw)}, 13")
    a(f"s_add_u32 {s(sT0)}, {s(sT0)}, {s(sT1)}")
    a(f"v_add_u32 {v(VDA0)}, {s(sT0)}, {v(L16)}")
    a(f"v_add_u32 {v(VDA1)}, 4096, {v(VDA0)}")
    a(f"v_mov_b32 {v(VCUR)}, {v(L16)}")
    a(f"v_add_u32 {v(VNXT)}, 32768, {v(L16)}")
    a(f"s_lshl_b32 {s(sT0)}, {s(sw)}, 12")
    a(f"s_add_u32 {s(sT0)}, {s(sT0)}, {AREG}")
    a(f"v_add_u32 {v(VA)}, {s(sT0)}, {v(L16)}")
    a(f"v_mov_b32 {v(VNEG)}, {NEGINF}")
    a(f"v_and_b32 {v(T0)}, 15, v0")
    a(f"v_and_b32 {v(T1)}, 2, {v(T0)}")
    a(f"v_cmp_eq_u32 vcc, 0, {v(T1)}")
    a(f"v_mov_b32 {v(T2)}, 0x3f803f80")
    a(f"v_and_b32 {v(T1)}, 4, {v(T0)}")
    a(f"v_cndmask_b32 {v(T2)}, 0, {v(T2)}, vcc")
    a(f"v_cmp_eq_u32 vcc, 0, {v(T1)}")
    a(f"v_and_b32 {v(T1)}, 1, {v(T0)}")
    a(f"v_mov_b32 {v(T3)}, 0x44444444")
    a(f"v_cndmask_b32 {v(SA)}, 0, {v(T2)}, vcc")
    a(f"v_cndmask_b32 {v(SA+2)}, {v(T2)}, 0, vcc")
    a(f"v_cmp_eq_u32 vcc, 0, {v(T1)}")
    a(f"v_mov_b32 {v(SA+1)}, {v(SA)}")
    a(f"v_mov_b32 {v(SA+3)}, {v(SA+2)}")
    a(f"v_mov_b32 {v(SI)}, 0xEEEEEEEE")
    a(f"v_cndmask_b32 {v(SI)}, {v(SI)}, {v(T3)}, vcc")
    a(f"v_and_b32 {v(T0)}, 31, v0")
    a(f"v_lshrrev_b32 {v(T1)}, 5, v0")
    a(f"v_lshlrev_b32 {v(T1)}, 2, {v(T1)}")
    a(f"v_sub_u32 {v(T0)}, {v(T0)}, {v(T1)}")
    for r in range(16):
        a(f"v_cmp_le_i32 {s(sM+2*r,2)}, {8*(r>>2)+(r&3)}, {v(T0)}")
    zero_state(a)
    a(f"s_mov_b32 {s(sslot)}, 65536")
    a(f"s_mov_b32 {s(scnt)}, 0")
    a(f"s_mov_b32 {s(snxt)}, 32768")
    a("s_waitcnt vmcnt(6)")
    a("s_barrier")
    a(rd(K0, (VCUR, 0)), rd(K1, (VCUR, 1024)))
    a("s_waitcnt lgkmcnt(0)")
    a(qk1(0, "0"), qk2(0))
    a(rd(K0, (VCUR, 4096)), rd(K1, (VCUR, 4096 + 1024)), rd(V0, (VCUR, 2048)))
    a.nop(16)
    first_max(a)

    def kB(t, p):
        return (VCUR, t * 4096 + p * 1024) if t < 8 else (VNXT, (t - 8) * 4096 + p * 1024)

    def vB(t, p):
        return (VCUR, t * 4096 + 2048 + p * 1024) if t < 8 else (VNXT, (t - 8) * 4096 + 2048 + p * 1024)

    def chunk_sync():
        a("s_waitcnt vmcnt(0)")
        a("s_barrier")
        skip = a.new("p2_nodma")
        a(f"s_cmp_ge_u32 {s(scnt)}, 6")
        a(f"s_cbranch_scc1 {skip}")
        dma_chunk(s(sslot), s(schunk))
        a(f"s_add_u32 {s(schunk)}, {s(schunk)}, 32768")
        a(f"s_add_u32 {s(sslot)}, {s(sslot)}, 32768")
        a(f"s_cmp_eq_u32 {s(sslot)}, 98304")
        a(f"s_cselect_b32 {s(sslot)}, 0, {s(sslot)}")
        a(f"s_cmp_ge_u32 {s(scnt)}, 2")
        a(f"s_cbranch_scc1 {skip}")
        a(f"s_lshl_b32 {s(sT1)}, {s(sw)}, 13")
        a(f"s_add_u32 {s(sT1)}, {s(sT1)}, {AREG}")
        second = a.new("p2_a2")
        a(f"s_cmp_eq_u32 {s(scnt)}, 1")
        a(f"s_cbranch_scc1 {second}")
        a(f"s_mov_b32 m0, {s(sT1)}")
        a("s_nop 0")
        for i in range(4):
            a(f"buffer_load_dwordx4 {v(VDA0)}, {s(sKA,4)}, 0 offen offset:{i*1024} lds")
        a(f"s_branch {skip}")
        a.label(second)
        a(f"s_add_u32 m0, {s(sT1)}, 4096")
        a("s_nop 0")
        for i in range(4):
            a(f"buffer_load_dwordx4 {v(VDA1)}, {s(sKA,4)}, 0 offen offset:{i*1024} lds")
        a.label(skip)

    a.label("p2_bloop")
    for j in range(8):
        step(a, j, kB, vB, pre_kread=chunk_sync if j == 6 else None)
    a(f"v_mov_b32 {v(VCUR)}, {v(VNXT)}")
    a(f"s_add_u32 {s(snxt)}, {s(snxt)}, 32768")
    a(f"s_cmp_eq_u32 {s(snxt)}, 98304")
    a(f"s_cselect_b32 {s(snxt)}, 0, {s(snxt)}")
    a(f"v_add_u32 {v(VNXT)}, {s(snxt)}, {v(L16)}")
    a(f"s_add_u32 {s(scnt)}, {s(scnt)}, 1")
    a(f"s_cmp_lt_u32 {s(scnt)}, 8")
    a("s_cbranch_scc1 p2_bloop")
    a("s_waitcnt lgkmcnt(0)")
    a(pv1(1), rsum(1))
    slowB, normB = finish(a, False, "B", force_slow)

    for r in range(8):
        a(f"v_mov_b32 {v(Q+r)}, {v(QA+r)}")
    for r in range(16):
        a(f"v_cndmask_b32 {v(C+r)}, {v(VNEG)}, 0, {s(sM+2*r,2)}")

    def kA(d, p):
        return (VA, (8 - d) * 4096 + p * 1024) if d <= 8 else None

    def vA(d, p):
        return (VA, (8 - d) * 4096 + 2048 + p * 1024) if d <= 8 else None

    a("s_waitcnt lgkmcnt(0)")
    a(rd(K0, kA(0, 0)), rd(K1, kA(0, 1)))
    a("s_waitcnt lgkmcnt(0)")
    a(qk1(0), qk2(0))
    a(rd(K0, kA(1, 0)), rd(K1, kA(1, 1)), rd(V0, vA(0, 0)))
    zero_state(a)
    a.nop(4)
    first_max(a)

    def preA(j):
        def f():
            d = j + 1
            skip = a.new("p2_valid")
            a(f"s_cmp_ge_u32 {s(st)}, {d}")
            a(f"s_cbranch_scc1 {skip}")
            for r in range(16):
                a(f"v_mov_b32 {v(C+r)}, {v(VNEG)}")
            a.label(skip)
            if d == 8:
                for r in range(16):
                    a(f"v_cndmask_b32 {v(C+r)}, {v(C+r)}, {v(VNEG)}, {s(sM+2*r,2)}")
            a.nop(2)
        return f

    for j in range(9):
        step(a, j, kA, vA, pre_qk=preA(j), last=(j == 8), w5=(3 if j <= 6 else 1))
    a("s_waitcnt lgkmcnt(0)")
    a(pv1(0), rsum(0))
    slowA, normA = finish(a, True, "A", force_slow)
    a("s_endpgm")

    a.label(slowB)
    a(f"s_mov_b32 {s(sOFF)}, {WS_KVB}")
    a(f"s_mov_b32 {s(sSTEP)}, 4096")
    a(f"s_mov_b32 {s(sN)}, 64")
    slow_path(a, False, "B")
    a(f"s_branch {normB}")
    a.label(slowA)
    a(f"s_lshl_b32 {s(sOFF)}, {s(sh)}, 18")
    a(f"s_lshl_b32 {s(sT0)}, {s(st)}, 12")
    a(f"s_add_u32 {s(sOFF)}, {s(sOFF)}, {s(sT0)}")
    a(f"s_add_u32 {s(sOFF)}, {s(sOFF)}, {WS_KVA}")
    a(f"s_mov_b32 {s(sSTEP)}, {(-4096) & 0xffffffff}")
    a(f"s_add_u32 {s(sN)}, {s(st)}, 1")
    a(f"s_min_u32 {s(sN)}, {s(sN)}, 9")
    slow_path(a, True, "A")
    a(f"s_branch {normA}")
    a.label(END)
    a("s_endpgm")
    return a.text()
```

```python
from dsl import *
from p1 import WS_OA, WS_OB, WS_SIZE

NAME = "outp_kernel"
SLOT = 32768
NS = 5
LDS = NS * SLOT


def gen():
    a = Asm()
    sWS, sW, sO = 12, 16, 20
    sx, sj, sbm, sbn, spart, sw = 34, 35, 36, 37, 38, 39
    sT0, sT1, sT2 = 40, 41, 42
    sslot, sdelta, scnt = 46, 47, 48
    sLO, sLW, sKO, sKW, sA, sB = 49, 50, 52, 53, 56, 57
    END = "p3_end"
    a("s_cmp_ge_u32 s2, 256")
    a(f"s_cbranch_scc1 {END}")
    a("s_load_dwordx2 s[4:5], s[0:1], 16")
    a("s_load_dwordx4 s[8:11], s[0:1], 56")
    a("s_load_dwordx2 s[6:7], s[0:1], 80")
    a("v_lshrrev_b32 v1, 6, v0")
    a("v_and_b32 v0, 63, v0")
    a(f"v_readfirstlane_b32 {s(sw)}, v1")
    a(f"s_and_b32 {s(sx)}, s2, 7")
    a(f"s_lshr_b32 {s(sj)}, s2, 3")
    a(f"s_lshr_b32 {s(spart)}, {s(sx)}, 2")
    a(f"s_and_b32 {s(sT0)}, {s(sx)}, 3")
    a(f"s_lshl_b32 {s(sT0)}, {s(sT0)}, 2")
    a(f"s_and_b32 {s(sbm)}, {s(sj)}, 3")
    a(f"s_add_u32 {s(sbm)}, {s(sbm)}, {s(sT0)}")
    a(f"s_lshr_b32 {s(sbn)}, {s(sj)}, 2")
    a("s_waitcnt lgkmcnt(0)")
    a(f"s_cmp_eq_u32 {s(spart)}, 1")
    a(f"s_cselect_b32 {s(sW)}, s8, s4")
    a(f"s_cselect_b32 {s(sW+1)}, s9, s5")
    a(f"s_mov_b32 {s(sW+2)}, {2<<20}")
    a(f"s_mov_b32 {s(sW+3)}, 0x00020000")
    a.srd(sWS, 6, WS_SIZE)
    a.srd(sO, 10, 8 << 20)
    a(f"s_cmp_ge_u32 {s(sw)}, 4")
    a("s_cbranch_scc1 p3_loader")

    ACC = 0
    OF = lambda b, tt, jj: 64 + 32 * b + 8 * tt + 4 * jj
    WF = lambda b, nb, jj: 64 + 32 * b + 16 + 8 * nb + 4 * jj
    OA_, WA = 128, [129, 130]
    VO = [131, 132]
    t0, t1, t2, t3, t4 = 136, 137, 138, 139, 140
    a(f"v_lshrrev_b32 {v(t0)}, 5, v0")
    a(f"s_and_b32 {s(sT0)}, {s(sw)}, 1")
    a(f"s_lshl_b32 {s(sT0)}, {s(sT0)}, 13")
    a(f"v_lshlrev_b32 {v(t1)}, 4, v0")
    a(f"v_add_u32 {v(OA_)}, {s(sT0)}, {v(t1)}")
    a(f"v_lshrrev_b32 {v(t2)}, 2, v0")
    a(f"v_and_b32 {v(t2)}, 3, {v(t2)}")
    a(f"v_lshlrev_b32 {v(t3)}, 2, {v(t0)}")
    a(f"v_add_u32 {v(t3)}, {v(t3)}, {v(t2)}")
    a(f"v_lshlrev_b32 {v(t3)}, 8, {v(t3)}")
    a(f"v_lshrrev_b32 {v(t4)}, 4, v0")
    a(f"v_and_b32 {v(t4)}, 1, {v(t4)}")
    a(f"v_lshlrev_b32 {v(t4)}, 5, {v(t4)}")
    a(f"v_add_u32 {v(t3)}, {v(t3)}, {v(t4)}")
    a(f"v_and_b32 {v(t4)}, 3, v0")
    a(f"v_lshlrev_b32 {v(t4)}, 3, {v(t4)}")
    a(f"v_add_u32 {v(t3)}, {v(t3)}, {v(t4)}")
    a(f"v_add_u32 {v(t3)}, 16384, {v(t3)}")
    a(f"s_and_b32 {s(sT0)}, {s(sw)}, 2")
    for nb in range(2):
        a(f"s_add_u32 {s(sT1)}, {s(sT0)}, {nb}")
        a(f"v_xor_b32 {v(t4)}, {s(sT1)}, {v(t2)}")
        a(f"v_lshlrev_b32 {v(t4)}, 6, {v(t4)}")
        a(f"v_add_u32 {v(WA[nb])}, {v(t3)}, {v(t4)}")
    a(f"v_and_b32 {v(t1)}, 31, v0")
    a(f"v_lshlrev_b32 {v(t1)}, 12, {v(t1)}")
    a(f"v_lshlrev_b32 {v(t2)}, 4, {v(t0)}")
    a(f"v_add_u32 {v(VO[0])}, {v(t1)}, {v(t2)}")
    a(f"v_add_u32 {v(VO[1])}, {32*4096}, {v(VO[0])}")
    for r in range(64):
        a(f"v_mov_b32 {v(ACC+r)}, 0")
    a(f"s_mov_b32 {s(sslot)}, 0")
    a(f"s_mov_b32 {s(scnt)}, 16")

    def reads(b, h):
        W = lambda nb, jj, p: f"ds_read_b64_tr_b16 {v(WF(b,nb,jj)+2*p,2)}, {v(WA[nb])} offset:{(16*(2*h+jj)+8*p)*256}"
        X = lambda tt, jj: f"ds_read_b128 {v(OF(b,tt,jj),4)}, {v(OA_)} offset:{tt*4096+(2*h+jj)*1024}"
        return [[W(0, 0, 0), W(0, 0, 1), X(0, 0)], [W(1, 0, 0), W(1, 0, 1), X(1, 0)],
                [W(0, 1, 0), W(0, 1, 1), X(0, 1)], [W(1, 1, 0), W(1, 1, 1), X(1, 1)]]

    def mfma(b, tt, nb, jj):
        d = v(ACC + 16 * (2 * tt + nb), 16)
        return f"v_mfma_f32_32x32x16_bf16 {d}, {v(WF(b,nb,jj),4)}, {v(OF(b,tt,jj),4)}, {d}"

    a("s_barrier")
    for g in reads(0, 0):
        a(*g)
    a.label("p3_loop")
    for h in range(2):
        b = h
        a("s_waitcnt lgkmcnt(0)")
        ms = [mfma(b, tt, nb, jj) for jj in range(2) for tt in range(2) for nb in range(2)]
        if h == 0:
            rd = reads(1, 1)
            for i, m in enumerate(ms):
                a(m)
                if i < 4:
                    a(*rd[i])
        else:
            a(ms[0])
            a(f"s_add_u32 {s(sslot)}, {s(sslot)}, {SLOT}")
            a(f"s_mov_b32 {s(sdelta)}, {SLOT}")
            a(f"s_cmp_eq_u32 {s(sslot)}, {NS*SLOT}")
            a(f"s_cselect_b32 {s(sdelta)}, {(-(NS-1)*SLOT) & 0xffffffff}, {s(sdelta)}")
            a(f"s_cselect_b32 {s(sslot)}, 0, {s(sslot)}")
            for r in [OA_] + WA:
                a(f"v_add_u32 {v(r)}, {s(sdelta)}, {v(r)}")
            a("s_barrier")
            rd = reads(0, 0)
            for i, m in enumerate(ms[1:]):
                if i < 4:
                    a(*rd[i])
                a(m)
    a(f"s_sub_u32 {s(scnt)}, {s(scnt)}, 1")
    a(f"s_cmp_lg_u32 {s(scnt)}, 0")
    a("s_cbranch_scc1 p3_loop")
    a("s_waitcnt lgkmcnt(0)")
    a(f"s_lshl_b32 {s(sT0)}, {s(sbm)}, 19")
    a(f"s_and_b32 {s(sT1)}, {s(sw)}, 1")
    a(f"s_lshl_b32 {s(sT1)}, {s(sT1)}, 18")
    a(f"s_add_u32 {s(sT0)}, {s(sT0)}, {s(sT1)}")
    a(f"s_lshl_b32 {s(sT1)}, {s(spart)}, 11")
    a(f"s_add_u32 {s(sT0)}, {s(sT0)}, {s(sT1)}")
    a(f"s_lshl_b32 {s(sT1)}, {s(sbn)}, 8")
    a(f"s_add_u32 {s(sT0)}, {s(sT0)}, {s(sT1)}")
    a(f"s_and_b32 {s(sT1)}, {s(sw)}, 2")
    a(f"s_lshl_b32 {s(sT1)}, {s(sT1)}, 6")
    a(f"s_add_u32 {s(sT0)}, {s(sT0)}, {s(sT1)}")
    a.nop(8)
    for tt in range(2):
        for nb in range(2):
            b = ACC + 16 * (2 * tt + nb)
            for i in range(8):
                a(f"v_cvt_pk_bf16_f32 {v(b+i)}, {v(b+2*i)}, {v(b+2*i+1)}")
            a.nop(2)
            a(f"v_permlane32_swap_b32 {v(b+0)}, {v(b+2)}")
            a(f"v_permlane32_swap_b32 {v(b+1)}, {v(b+3)}")
            a(f"v_permlane32_swap_b32 {v(b+4)}, {v(b+6)}")
            a(f"v_permlane32_swap_b32 {v(b+5)}, {v(b+7)}")
            a.nop(2)
            for pair in range(2):
                a(f"buffer_store_dwordx4 {v(b+4*pair,4)}, {v(VO[tt])}, {s(sO,4)}, {s(sT0)} offen offset:{nb*64+pair*32}")
    a("s_endpgm")

    a.label("p3_loader")
    VOF = 1
    VW = [2, 3, 4, 5]
    t0, t1, t2 = 8, 9, 10
    slw = sw
    a(f"s_sub_u32 {s(slw)}, {s(sw)}, 4")
    a(f"s_lshl_b32 {s(sT0)}, {s(sbm)}, 2")
    a(f"s_add_u32 {s(sT0)}, {s(sT0)}, {s(slw)}")
    a(f"s_lshl_b32 {s(sT0)}, {s(sT0)}, 16")
    a(f"v_lshlrev_b32 {v(t0)}, 4, v0")
    a(f"v_add_u32 {v(VOF)}, {s(sT0)}, {v(t0)}")
    a(f"v_lshrrev_b32 {v(t2)}, 4, v0")
    a(f"s_lshl_b32 {s(sT0)}, {s(slw)}, 4")
    a(f"v_add_u32 {v(t0)}, {s(sT0)}, {v(t2)}")
    a(f"v_lshlrev_b32 {v(t0)}, 11, {v(t0)}")
    a(f"v_lshrrev_b32 {v(t1)}, 2, v0")
    a(f"v_and_b32 {v(t1)}, 3, {v(t1)}")
    a(f"v_xor_b32 {v(t1)}, {v(t1)}, {v(t2)}")
    a(f"v_lshlrev_b32 {v(t1)}, 6, {v(t1)}")
    a(f"v_add_u32 {v(t0)}, {v(t0)}, {v(t1)}")
    a(f"v_and_b32 {v(t1)}, 3, v0")
    a(f"v_lshlrev_b32 {v(t1)}, 4, {v(t1)}")
    a(f"v_add_u32 {v(t0)}, {v(t0)}, {v(t1)}")
    a(f"s_lshl_b32 {s(sT1)}, {s(sbn)}, 8")
    a(f"v_add_u32 {v(VW[0])}, {s(sT1)}, {v(t0)}")
    for i in range(1, 4):
        a(f"v_add_u32 {v(VW[i])}, {4*2048}, {v(VW[i-1])}")
    a(f"s_lshl_b32 {s(sLO)}, {s(slw)}, 12")
    a(f"s_add_u32 {s(sLW)}, {s(sLO)}, 16384")
    a(f"s_mov_b32 {s(sKO)}, {WS_OA}")
    a(f"s_cmp_eq_u32 {s(spart)}, 1")
    a(f"s_cselect_b32 {s(sKO)}, {WS_OB}, {s(sKO)}")
    a(f"s_mov_b32 {s(sKW)}, 0")
    a(f"s_mov_b32 {s(sslot)}, 0")

    def issue():
        a(f"s_add_u32 {s(sB)}, {s(sslot)}, {s(sLW)}")
        for i in range(4):
            a(f"s_add_u32 m0, {s(sB)}, {i*1024}")
            a("s_nop 0")
            a(f"buffer_load_dwordx4 {v(VW[i])}, {s(sW,4)}, {s(sKW)} offen lds")
        a(f"s_add_u32 m0, {s(sslot)}, {s(sLO)}")
        a("s_nop 0")
        for i in range(4):
            a(f"buffer_load_dwordx4 {v(VOF)}, {s(sWS,4)}, {s(sKO)} offen offset:{i*1024} lds")
        a(f"s_add_u32 {s(sKO)}, {s(sKO)}, 4096")
        a(f"s_add_u32 {s(sKW)}, {s(sKW)}, {64*2048}")
        a(f"s_add_u32 {s(sslot)}, {s(sslot)}, {SLOT}")
        a(f"s_cmp_eq_u32 {s(sslot)}, {NS*SLOT}")
        a(f"s_cselect_b32 {s(sslot)}, 0, {s(sslot)}")

    NI = 8
    for _ in range(NS):
        issue()
    a(f"s_waitcnt vmcnt({(NS-1)*NI})")
    a("s_barrier")
    a(f"s_mov_b32 {s(scnt)}, {16-NS}")
    a.label("p3_lloop")
    a(f"s_waitcnt vmcnt({(NS-2)*NI})")
    a("s_barrier")
    issue()
    a(f"s_sub_u32 {s(scnt)}, {s(scnt)}, 1")
    a(f"s_cmp_lg_u32 {s(scnt)}, 0")
    a("s_cbranch_scc1 p3_lloop")
    for n in range(16 - NS + 1, 16):
        a(f"s_waitcnt vmcnt({(15-n)*NI})")
        a("s_barrier")
    a("s_barrier")
    a("s_endpgm")
    a.label(END)
    a("s_endpgm")
    return a.text()
```

```python
import sys, os
sys.path.insert(0, os.path.dirname(os.path.abspath(__file__)))
import p1, p2, p3
from dsl import *

HEADER = open("concat_heads__sliding_block__grouped_kv_mqa__prompt.s.ref").read().split("; Override launch")[0]

def build(force_slow=False):
    ks = [(p1.NAME, p1.gen(), p1.LDS, 192), (p2.NAME, p2.gen(force_slow), p2.LDS, p2.NVGPR), (p3.NAME, p3.gen(), p3.LDS, 144)]
    out = HEADER
    out += "; Three launches: projections -> attention -> output projections (generated by work/gen.py, hand-written schedule)\n"
    for n, _, lds, _ in ks:
        out += f"; @launch kernel={n} grid=(256,1,1) block=(512,1,1) lds={lds}\n"
    out += '.amdgcn_target "amdgcn-amd-amdhsa--gfx950"\n.text\n'
    for n, body, _, _ in ks:
        out += kernel_head(n) + body
    for n, _, _, vg in ks:
        out += kernel_desc(n, vg)
    return out

if __name__ == "__main__":
    path = sys.argv[1] if len(sys.argv) > 1 else "concat_heads__sliding_block__grouped_kv_mqa__prompt.s"
    open(path, "w").write(build(force_slow=("slow" in sys.argv[2:])))
    print("wrote", path)
```
